```python
import torch

def _softmax(x, axis=-1):
    return torch.softmax(x, dim=axis)
def _gelu(x):
    return torch.nn.functional.gelu(x, approximate="tanh")
def _silu(x):
    return torch.nn.functional.silu(x)
def _sigmoid(x):
    return torch.sigmoid(x)
def _layernorm(x, axis=-1, eps=1e-5):
    m = x.mean(dim=axis, keepdim=True)
    v = x.var(dim=axis, keepdim=True, unbiased=False)
    return (x - m) / torch.sqrt(v + eps)
def _scatter_add(tgt, idx, src, axis=0):
    return tgt.clone().index_add_(axis, idx, src)
def _segment_sum(src, seg, n):
    out = torch.zeros((n,) + src.shape[1:], dtype=src.dtype)
    return out.index_add_(0, seg, src)
def _pad(x, pw):
    flat = tuple(v for pair in reversed(pw) for v in pair)
    return torch.nn.functional.pad(x, flat)

kernel_name = 'sequential_preLN__spectral_gfnet__dense_activation_squared_relu__prompt'

def setup_inputs():

    _w = (lambda a: (lambda t: t.to(torch.bfloat16) if t.is_floating_point() else t)(torch.as_tensor(a)))
    def _A_setup():
        B, S, D = 1, 2048, 512
        Df = D // 2 + 1
        return {
            "x": _w((lambda *s: torch.randn(*s, dtype=torch.bfloat16) * 0.05)(B, S, D)),
            "w_r": _w((lambda *s: torch.randn(*s, dtype=torch.bfloat16) * 0.4)(S, Df) * 0.02),
            "w_i": _w((lambda *s: torch.randn(*s, dtype=torch.bfloat16) * 0.4)(S, Df) * 0.02),
        }
    _A_in = _A_setup()

    def _B_setup():
        B, S, D, F = 1, 2048, 512, 1376
        return {
            "x": _w((lambda *s: torch.randn(*s, dtype=torch.bfloat16) * 0.05)(B, S, D)),
            "w1": _w((lambda *s: torch.randn(*s, dtype=torch.bfloat16) * 0.05)(D, F)),
            "b1": _w((lambda *s: torch.randn(*s, dtype=torch.bfloat16) * 0.2)(F)),
            "w2": _w((lambda *s: torch.randn(*s, dtype=torch.bfloat16) * 0.05)(F, D)),
            "b2": _w((lambda *s: torch.randn(*s, dtype=torch.bfloat16) * 0.8)(D)),
        }
    _B_in = _B_setup()

    return {
        "A_x": _A_in["x"],
        "A_w_r": _A_in["w_r"],
        "A_w_i": _A_in["w_i"],
        "B_x": _B_in["x"],
        "B_w1": _B_in["w1"],
        "B_b1": _B_in["b1"],
        "B_w2": _B_in["w2"],
        "B_b2": _B_in["b2"],
    }

def reference(A_x, A_w_r, A_w_i, B_x, B_w1, B_b1, B_w2, B_b2):
    def _A_ref(x, w_r, w_i):
        B, S, D = x.shape
        X = (lambda x, axes=(-2,-1): torch.fft.rfft2(x.float(), dim=axes))(x, axes=(-2, -1))
        W = w_r + 1j * w_i
        X = X * W
        y = (lambda x, s, axes=(-2,-1): torch.fft.irfft2(x, s=s, dim=axes).to(torch.bfloat16))(X, (S, D), axes=(-2, -1))
        return y

    def _B_ref(x, w1, b1, w2, b2):
        h = torch.einsum("bsd,df->bsf", x, w1) + b1
        zero = torch.zeros_like(h)
        r = torch.where(h > zero, h, zero)
        h = r * r
        out = torch.einsum("bsf,fd->bsd", h, w2) + b2
        return out

    x = A_x
    h = x + _A_ref(_layernorm(x, axis=-1), A_w_r, A_w_i)
    h2 = h + _B_ref(_layernorm(h, axis=-1), B_w1, B_b1, B_w2, B_b2)
    return h2
```

```python
import re

TRANS = ('v_exp_f32', 'v_log_f32', 'v_rcp_f32', 'v_rsq_f32', 'v_sqrt_f32', 'v_sin_f32', 'v_cos_f32')


def regs_of(tok):
    tok = tok.strip()
    tok = re.sub(r'^(-|neg\(|abs\()', '', tok).rstrip(')').strip('|')
    m = re.fullmatch(r'([vas])(\d+)', tok)
    if m:
        return {(m.group(1), int(m.group(2)))}
    m = re.fullmatch(r'([vas])\[(\d+):(\d+)\]', tok)
    if m:
        return {(m.group(1), i) for i in range(int(m.group(2)), int(m.group(3)) + 1)}
    if tok in ('vcc', 'vcc_lo', 'vcc_hi'):
        return {('s', 'vcc')}
    if tok in ('exec', 'exec_lo', 'exec_hi'):
        return {('s', 'exec')}
    if tok == 'm0':
        return {('s', 'm0')}
    return set()


class Ins:
    def __init__(self, text):
        self.text = text
        t = text.split(';')[0].strip()
        self.label = t.endswith(':')
        self.directive = t.startswith('.')
        self.op = ''
        self.defs = set()
        self.uses = set()
        self.kind = 'other'
        self.states = 1
        if self.label or self.directive or not t:
            self.states = 0
            self.kind = 'none'
            return
        parts = t.split(None, 1)
        op = parts[0]
        self.op = op
        rest = parts[1] if len(parts) > 1 else ''
        ops = []
        depth = 0
        cur = ''
        for ch in rest:
            if ch == '[':
                depth += 1
            if ch == ']':
                depth -= 1
            if ch == ',' and depth == 0:
                ops.append(cur.strip())
                cur = ''
            else:
                cur += ch
        if cur.strip():
            ops.append(cur.strip())
        mods = ''
        if ops:
            sp = ops[-1].split(None, 1)
            ops[-1] = sp[0]
            mods = sp[1] if len(sp) > 1 else ''
        self.ops = ops
        self.mods = mods
        R = [regs_of(o) for o in ops]
        if op == 's_nop':
            self.kind = 'nop'
            self.states = int(ops[0], 0) + 1
        elif op.startswith('v_mfma'):
            self.kind = 'mfma'
            self.defs = R[0]
            self.A, self.B, self.C = R[1], R[2], R[3]
            self.uses = R[1] | R[2] | R[3]
            if '32x32x16' in op:
                self.passes = 8
            elif '16x16x32' in op:
                self.passes = 4
            elif '4x4x4' in op:
                self.passes = 2
            else:
                raise ValueError(op)
        elif op.startswith('v_'):
            self.kind = 'valu'
            self.dpp = ('_dpp' in op) or ('quad_perm' in mods) or ('row_' in mods)
            self.trans = op.replace('_e32', '').replace('_e64', '') in TRANS
            if op.startswith('v_permlane'):
                self.defs = R[0] | R[1]
                self.uses = R[0] | R[1]
            elif op.startswith('v_cmp'):
                self.defs = R[0]
                self.uses = set().union(*R[1:])
            elif op.startswith(('v_add_co', 'v_sub_co', 'v_addc_co')):
                self.defs = R[0] | R[1]
                self.uses = set().union(*R[2:])
            else:
                self.defs = R[0]
                self.uses = set().union(*R[1:]) if len(R) > 1 else set()
                if op.startswith(('v_fmac', 'v_dot2c', 'v_writelane')) or self.dpp:
                    self.uses |= R[0]
                if op.startswith('v_cndmask') and len(ops) == 3:
                    self.uses |= {('s', 'vcc')}
        elif op.startswith('ds_'):
            self.kind = 'ds'
            if op.startswith(('ds_read', 'ds_bpermute', 'ds_swizzle', 'ds_permute')):
                self.defs = R[0]
                self.uses = set().union(*R[1:])
            else:
                self.uses = set().union(*R)
        elif op.startswith(('buffer_', 'global_')):
            self.kind = 'vmem'
            self.lds = (' lds' in ' ' + mods) or ('_lds_' in op)
            self.store = '_store' in op or '_atomic' in op
            if self.lds:
                self.uses = set().union(*R) | {('s', 'm0')}
            elif self.store:
                self.uses = set().union(*R)
                self.data = R[0] if op.startswith('buffer_') else R[1]
                self.wide = ('x4' in op) or ('x3' in op)
                if '_atomic' in op and 'sc0' in mods:
                    self.defs = R[0]
            else:
                self.defs = R[0]
                self.uses = set().union(*R[1:])
        elif op.startswith('s_'):
            self.kind = 'salu'
            if op.startswith(('s_cmp', 's_cbranch', 's_branch', 's_waitcnt', 's_barrier', 's_endpgm', 's_sleep', 's_setprio', 's_bitcmp')):
                self.uses = set().union(*R) if R else set()
            else:
                self.defs = R[0] if R else set()
                self.uses = set().union(*R[1:]) if len(R) > 1 else set()
                if 'saveexec' in op:
                    self.defs |= {('s', 'exec')}
        else:
            raise ValueError('unknown op ' + text)


def vg(s):
    return {r for r in s if r[0] in 'va'}


def sg(s):
    return {r for r in s if r[0] == 's'}


MF_RD = {2: 5, 4: 8, 8: 12}
MF_COV = {2: 4, 4: 6, 8: 10}
MF_WAR = {2: 1, 4: 3, 8: 7}


def need(p, c):
    n = 0
    if p.kind == 'valu':
        pv = vg(p.defs)
        ps = sg(p.defs)
        if c.kind == 'mfma' and pv & c.uses:
            n = max(n, 2)
        if c.kind == 'valu':
            if c.dpp and pv & c.uses:
                n = max(n, 2)
            if c.op.startswith('v_permlane') and pv & c.uses:
                n = max(n, 2)
            if c.op.startswith(('v_readlane', 'v_readfirstlane')) and pv & c.uses:
                n = max(n, 1)
            if p.trans and not c.trans and pv & c.uses:
                n = max(n, 1)
            if ps & c.uses:
                n = max(n, 4 if c.op.startswith(('v_readlane', 'v_writelane')) else 2)
            if ('s', 'exec') in ps:
                n = max(n, 5 if c.dpp else 4)
        if c.kind == 'vmem' and ps & c.uses:
            n = max(n, 5)
        if c.kind == 'mfma' and ('s', 'exec') in ps:
            n = max(n, 4)
        if p.trans and c.kind in ('vmem', 'ds') and pv & c.uses:
            n = max(n, 1)
        if c.kind == 'salu' and ps & c.uses:
            n = max(n, 1)
    if p.kind == 'salu':
        if ('s', 'm0') in p.defs and c.kind == 'vmem' and getattr(c, 'lds', False):
            n = max(n, 1)
    if p.kind == 'mfma':
        D = p.defs
        if c.kind == 'mfma':
            if D & (c.A | c.B):
                n = max(n, MF_RD[p.passes])
            if D & c.C:
                if D == c.C and c.passes == p.passes:
                    n = max(n, 2 if p.passes == 2 else 0)
                else:
                    n = max(n, MF_COV[p.passes])
            elif D & c.defs:
                n = max(n, MF_COV[p.passes])
        elif c.kind in ('valu', 'vmem', 'ds'):
            if D & (c.uses | c.defs):
                n = max(n, MF_RD[p.passes])
            if c.kind == 'valu' and vg(p.C) & c.defs:
                n = max(n, MF_WAR[p.passes])
    if p.kind == 'vmem' and getattr(p, 'store', False) and getattr(p, 'wide', False):
        if c.kind in ('valu', 'mfma', 'ds', 'vmem') and p.data & c.defs:
            n = max(n, 2)
    if p.kind == 'ds' and p.op in ('ds_write_b128', 'ds_write_b96') and c.kind == 'valu' and (vg(p.uses) & c.defs):
        n = max(n, 1)
    return n


class Asm:
    def __init__(self):
        self.lines = []

    def __call__(self, text):
        for l in text.split('\n'):
            l = l.strip()
            if l:
                self.lines.append(l)

    def finish(self, verbose=False):
        out = []
        hist = []
        padded = 0
        for l in self.lines:
            ins = Ins(l)
            if ins.kind != 'none':
                dist = 0
                req = 0
                for p in reversed(hist):
                    if dist >= 20:
                        break
                    if p.kind != 'none':
                        r = need(p, ins) - dist
                        if r > req:
                            req = r
                        dist += p.states
                if req > 0:
                    padded += req
                    while req > 0:
                        k = min(req, 16)
                        nop = Ins(f's_nop {k-1}')
                        hist.append(nop)
                        out.append('    ' + nop.text + '    ; hazard pad')
                        req -= k
            hist.append(ins)
            out.append(l if ins.label or ins.directive else '    ' + l)
        if verbose:
            print('hazard pad states inserted:', padded)
        return '\n'.join(out) + '\n'
```

```python
import sys, struct, math, os
sys.path.insert(0, os.path.dirname(os.path.abspath(__file__)))
from asmlib import Asm

NAME = 'sequential_preLN__spectral_gfnet__dense_activation_squared_relu__prompt'
PROFILE = int(os.environ.get('PROFILE', '0'))
STOP = int(os.environ.get('STOP', '99'))


def f2u(x):
    return struct.unpack('<I', struct.pack('<f', x))[0]


def hx(x):
    return '0x%08x' % f2u(x)


CNT = 0x0
RS1 = 0x10000
XT = 0x100000
WT = 0x300000
HF = 0x500000
WALL = 0x700000
W2F = 0x900000
HH = 0xB00000
HB = 0xD00000
STAMP = 0x1400000
WS_SIZE = 0x1500000
C_B1, C_B1B, C_B2 = 0, 8, 16
C_B3A, C_B3B = 32, 96
NCNT = 192

S_W = 's3'
S_X8 = 's4'
S_IDX = 's5'
S_I = 's6'
S_C = 's7'
SRD_X, SRD_WR, SRD_WI, SRD_W1, SRD_B1, SRD_W2, SRD_B2, SRD_OUT, SRD_DBG, SRD_WS = [8 + 4 * i for i in range(10)]
S_TMO = 's48'
def srd(n):
    return f's[{n}:{n+3}]'


V_L, V_L16 = 'v1', 'v2'


def vr(b, n=4):
    return f'v[{b}:{b+n-1}]'


def ar(b, n=4):
    return f'a[{b}:{b+n-1}]'


class Cnt:
    def __init__(self, a, name, cap):
        self.a, self.name, self.cap = a, name, cap
        self.n = 0
        self.done = 0

    def issue(self, k=1):
        self.n += k
        return self.n

    def wait(self, tok):
        if tok <= self.done:
            return
        left = min(self.n - tok, self.cap)
        self.a(f's_waitcnt {self.name}({left})')
        self.done = self.n - left

    def waitall(self):
        self.a(f's_waitcnt {self.name}(0)')
        self.done = self.n

    def sync0(self):
        self.done = self.n


a = Asm()
vm = Cnt(a, 'vmcnt', 63)
lg = Cnt(a, 'lgkmcnt', 15)
lab_n = [0]


def newlab(p):
    lab_n[0] += 1
    return f'L_{p}_{lab_n[0]}'


NSTAMP = 14
def stamp(k):
    if PROFILE:
        a(f's_memrealtime s[{72+2*k}:{73+2*k}]')
        a('s_waitcnt lgkmcnt(0)')
        lg.sync0()


def sigma_code(dst, n, t):
    a(f'v_and_b32 {dst}, 19, {n}')
    a(f'v_and_b32 {t}, 4, {n}')
    a(f'v_lshl_or_b32 {dst}, {t}, 1, {dst}')
    a(f'v_and_b32 {t}, 8, {n}')
    a(f'v_lshrrev_b32 {t}, 1, {t}')
    a(f'v_or_b32 {dst}, {dst}, {t}')


def arrive(off_sreg, only_w0=True, tmp='v3', tmp2='v4'):
    l = newlab('arr')
    if only_w0:
        a(f's_cmp_lg_u32 {S_W}, 0')
        a(f's_cbranch_scc1 {l}')
    a(f'v_mov_b32 {tmp}, 1')
    a(f'v_mov_b32 {tmp2}, 0')
    a('s_mov_b64 exec, 1')
    a(f'buffer_atomic_add {tmp}, {tmp2}, {srd(SRD_WS)}, {off_sreg} offen sc1')
    a('s_mov_b64 exec, -1')
    a(f'{l}:')
    if not only_w0:
        vm.issue()


def poll(off_sreg, nshard, target, tmp='v3', tmp2='v4', only_w0=True):
    l, lp = newlab('pw'), newlab('pl')
    if only_w0:
        a(f's_cmp_lg_u32 {S_W}, 0')
        a(f's_cbranch_scc1 {l}')
    a(f'v_and_b32 {tmp2}, {nshard-1}, {V_L}')
    a(f'v_lshlrev_b32 {tmp2}, 8, {tmp2}')
    a(f'{lp}:')
    a(f'buffer_load_dword {tmp}, {tmp2}, {srd(SRD_WS)}, {off_sreg} offen sc1')
    a('s_waitcnt vmcnt(0)')
    a(f'v_cmp_ne_u32 vcc, {target}, {tmp}')
    a(f's_cbranch_vccz {l}')
    a(f's_sub_u32 {S_TMO}, {S_TMO}, 1')
    a(f's_cbranch_scc1 {l}_t')
    a('s_sleep 1')
    a(f's_branch {lp}')
    a(f'{l}_t:')
    a(f's_mov_b32 {S_TMO}, 0')
    a(f'{l}:')


K = NAME + '_kernel'
a(f'{K}:')
a('s_cmp_ge_u32 s2, 256')
a('s_cbranch_scc1 L_end')
if PROFILE:
    a('s_memrealtime s[72:73]')
for n, off in ((SRD_X, 0), (SRD_WR, 8), (SRD_WI, 16), (SRD_W1, 32), (SRD_W2, 48), (SRD_WS, 80), (SRD_DBG, 72), (SRD_B1, 40), (SRD_B2, 56), (SRD_OUT, 64)):
    a(f's_load_dwordx2 s[{n}:{n+1}], s[0:1], {off}')
for n, sz in ((SRD_X, 2097152), (SRD_WR, 2048 * 257 * 2), (SRD_WI, 2048 * 257 * 2), (SRD_W1, 512 * 1376 * 2), (SRD_B1, 1376 * 2),
              (SRD_W2, 1376 * 512 * 2), (SRD_B2, 1024), (SRD_OUT, 2097152), (SRD_DBG, 256), (SRD_WS, WS_SIZE)):
    a(f's_mov_b32 s{n+2}, {sz}')
    a(f's_mov_b32 s{n+3}, 0x20000')
a(f's_mov_b32 {S_TMO}, 0x10000')
a(f'v_and_b32 {V_L}, 63, v0')
a('v_lshrrev_b32 v3, 6, v0')
a(f'v_lshlrev_b32 {V_L16}, 4, {V_L}')
a(f'v_readfirstlane_b32 {S_W}, v3')
a(f's_and_b32 {S_X8}, s2, 7')
a(f's_lshr_b32 {S_IDX}, s2, 3')
a(f's_lshr_b32 {S_I}, {S_IDX}, 2')
a(f's_lshl_b32 {S_I}, {S_I}, 3')
a(f's_add_u32 {S_I}, {S_I}, {S_X8}')
a(f's_and_b32 {S_C}, {S_IDX}, 3')

G0 = 128
V_SIG, V_H, V_KF, V_STEP, V_A0, V_SGA, V_SGB, V_SC = 'v5', 'v6', 'v7', 'v8', 'v9', 'v10', 'v11', 'v12'
a(f'v_and_b32 v3, 31, {V_L}')
a(f'v_lshrrev_b32 {V_H}, 5, {V_L}')
sigma_code(V_SIG, 'v3', 'v4')
a(f's_lshl_b32 s50, {S_C}, 7')
a(f's_lshl_b32 s51, {S_W}, 5')
a('s_add_u32 s50, s50, s51')
a(f'v_add_u32 {V_KF}, s50, {V_SIG}')
a(f'v_lshrrev_b32 v3, 1, {V_KF}')
a(f'v_and_b32 v4, 1, {V_KF}')
a(f'v_cmp_eq_u32 vcc, 1, {V_KF}')
a('v_mov_b32 v13, 0x100')
a('v_cndmask_b32 v3, v3, v13, vcc')
a('v_cndmask_b32 v4, v4, 0, vcc')
a('v_cvt_f32_u32 v3, v3')
a('v_cvt_f32_u32 v4, v4')
a(f'v_mul_f32 {V_STEP}, {hx(1/512)}, v3')
a(f'v_mul_f32 v4, 0x3e800000, v4')
a(f'v_cvt_f32_u32 v3, {V_H}')
a(f'v_mul_f32 v3, {hx(8.0)}, v3')
a(f'v_fma_f32 {V_A0}, {V_STEP}, v3, v4')
a(f'v_bfe_i32 {V_SGB}, {V_KF}, 1, 1')
a(f'v_and_b32 {V_SGB}, 0x80008000, {V_SGB}')
a(f'v_lshrrev_b32 v3, 1, {V_KF}')
a(f'v_and_b32 v3, v3, {V_KF}')
a(f'v_lshrrev_b32 v4, 2, {V_KF}')
a('v_xor_b32 v3, v3, v4')
a('v_bfe_i32 v3, v3, 0, 1')
a(f'v_and_b32 {V_SGA}, 0x80008000, v3')
a(f'v_cmp_gt_u32 vcc, 2, {V_KF}')
a(f'v_mov_b32 {V_SC}, {hx(1/16)}')
a(f'v_mov_b32 v13, {hx(1/16/math.sqrt(2))}')
a(f'v_cndmask_b32 {V_SC}, {V_SC}, v13, vcc')


def ggen(u):
    T = 16
    for j in range(8):
        if u == 0 and j == 0:
            a(f'v_cos_f32 v{T}, {V_A0}')
        else:
            a(f'v_fmamk_f32 v{T+j}, {V_STEP}, {hx(float(16*u+j))}, {V_A0}')
    for j in range(8):
        if not (u == 0 and j == 0):
            a(f'v_cos_f32 v{T+j}, v{T+j}')
    for jj in range(4):
        a(f'v_cvt_pk_bf16_f32 v{G0+4*u+jj}, v{T+2*jj}, v{T+2*jj+1}')


for u in range(3):
    ggen(u)

XL = 0
RL = 32768
V_XD = 'v24'
a(f's_and_b32 s51, {S_W}, 1')
a(f's_lshr_b32 s52, {S_W}, 1')
a('s_lshl_b32 s53, s51, 7')
a('s_lshl_b32 s52, s52, 14')
a('s_lshl_b32 s51, s51, 12')
a('s_or_b32 s53, s53, s52')
a('s_or_b32 s53, s53, s51')
a(f'v_xor_b32 {V_XD}, s53, {V_L16}')
a(f's_lshl_b32 s54, {S_I}, 15')
a(f's_lshl_b32 s55, {S_W}, 13')
a(f's_lshl_b32 s56, {S_C}, 13')
a('s_add_u32 s56, s56, s54')
a(f's_lshl_b32 s57, {S_W}, 11')
a('s_add_u32 s56, s56, s57')
V_WO0, V_WO1, V_WS = 'v25', 'v26', 'v27'
a(f's_and_b32 s58, {S_IDX}, 7')
a('s_lshl_b32 s58, s58, 5')
a(f'v_lshrrev_b32 v3, 2, {V_L}')
a('v_add_u32 v3, s58, v3')
a(f'v_and_b32 v4, 3, {V_L}')
a(f'v_lshlrev_b32 {V_WS}, 13, v3')
a(f'v_lshl_add_u32 {V_WS}, v4, 4, {V_WS}')
a('v_mul_u32_u24 v4, 514, v4')
a(f'v_lshl_add_u32 {V_WO1}, v3, 1, v4')
a('v_cmp_eq_u32 vcc, 0, v3')
a('v_mov_b32 v13, 0x100')
a('v_cndmask_b32 v3, v3, v13, vcc')
a(f'v_lshl_add_u32 {V_WO0}, v3, 1, v4')
a(f'v_add_u32 {V_WO1}, 32, {V_WO1}')
a(f's_lshr_b32 s58, {S_IDX}, 3')
a(f's_lshl_b32 s59, s58, 2')
a(f's_add_u32 s59, s59, {S_W}')
a('s_mul_i32 s60, s59, 2056')
a(f's_mul_i32 s61, {S_X8}, {4*32896}')
a('s_add_u32 s60, s60, s61')
a('s_add_u32 s61, s60, 32896')
a('s_add_u32 s62, s61, 32896')
a('s_add_u32 s63, s62, 32896')
a('s_lshl_b32 s64, s58, 11')
a(f's_lshl_b32 s65, {S_X8}, 8')
a('s_add_u32 s64, s64, s65')
a(f's_lshl_b32 s65, {S_W}, 6')
a('s_add_u32 s64, s64, s65')
a(f's_add_u32 s64, s64, {WT}')

a('s_waitcnt lgkmcnt(0)')
stamp(1)
a(f's_or_b32 s51, s2, {S_W}')
a('s_cmp_lg_u32 s51, 0')
a('s_cbranch_scc1 L_noinit')
a(f'v_lshlrev_b32 v3, 8, {V_L}')
a('v_mov_b32 v4, 0')
for t in range(NCNT // 64):
    a(f's_mov_b32 s51, {CNT + t*16384}')
    a(f'buffer_store_dword v4, v3, {srd(SRD_WS)}, s51 offen sc1')
a('L_noinit:')
a(f's_mov_b32 m0, s55')
for e in range(8):
    cst = (e << 4) | ((8 * (e >> 2) + (e & 3)) << 10)
    if e == 0:
        a(f'buffer_load_dwordx4 {V_XD}, {srd(SRD_X)}, s54 offen lds')
    else:
        a(f'v_xor_b32 v3, {cst}, {V_XD}')
        a('s_add_u32 m0, m0, 1024')
        a(f'buffer_load_dwordx4 v3, {srd(SRD_X)}, s54 offen lds')
    t_x = vm.issue()
ST = 64
a(f'buffer_load_dwordx4 {vr(ST)}, {V_L16}, {srd(SRD_X)}, s56 offen')
a(f'buffer_load_dwordx4 {vr(ST+4)}, {V_L16}, {srd(SRD_X)}, s56 offen offset:1024')
t_st = vm.issue(2)
WRAW = 40
for e in range(2):
    for b in range(4):
        vo = V_WO0 if e == 0 else V_WO1
        a(f'buffer_load_ushort v{WRAW+8*e+2*b}, {vo}, {srd(SRD_WR)}, s{60+b} offen')
        a(f'buffer_load_ushort v{WRAW+8*e+2*b+1}, {vo}, {srd(SRD_WI)}, s{60+b} offen')
t_w = vm.issue(16)
a(f's_cmp_ge_u32 {S_I}, 44')
a('s_cbranch_scc1 L_dma_w2')
a(f'v_lshrrev_b32 v3, 2, {V_L}')
a('v_mul_u32_u24 v3, 2752, v3')
a(f'v_and_b32 v4, 3, {V_L}')
a('v_lshl_add_u32 v3, v4, 4, v3')
a(f's_mul_i32 s51, {S_W}, {8*44032}')
a(f's_lshl_b32 s52, {S_I}, 6')
a('s_add_u32 s51, s51, s52')
a(f's_add_u32 m0, s55, {RL}')
for e in range(8):
    if e:
        a('s_add_u32 m0, m0, 1024')
        a('s_add_u32 s51, s51, 44032')
    a(f'buffer_load_dwordx4 v3, {srd(SRD_W1)}, s51 offen lds')
a('s_branch L_dma_done')
a('L_dma_w2:')
S_GW = 's66'
a(f's_sub_u32 {S_GW}, {S_I}, 44')
a(f's_lshl_b32 {S_GW}, {S_GW}, 2')
a(f's_add_u32 {S_GW}, {S_GW}, {S_C}')
a(f's_lshl_b32 {S_GW}, {S_GW}, 2')
a(f's_add_u32 {S_GW}, {S_GW}, {S_W}')
a(f'v_lshrrev_b32 v3, 3, {V_L}')
a('v_lshlrev_b32 v3, 10, v3')
a(f'v_and_b32 v4, 7, {V_L}')
a('v_lshl_add_u32 v3, v4, 4, v3')
a(f's_lshr_b32 s51, {S_GW}, 3')
a('s_lshl_b32 s51, s51, 14')
a(f's_and_b32 s52, {S_GW}, 7')
a('s_lshl_b32 s52, s52, 7')
a('s_add_u32 s51, s51, s52')
a(f's_add_u32 m0, s55, {RL}')
for e in range(6):
    if e:
        a('s_add_u32 m0, m0, 1024')
        a(f's_add_u32 s51, s51, {8192 if e & 1 else 40*16384 - 8192}')
    a(f'buffer_load_dwordx4 v3, {srd(SRD_W2)}, s51 offen lds')
a('L_dma_done:')
t_role = vm.issue(6)

for u in range(3, 8):
    ggen(u)
for u in range(8):
    for jj in range(4):
        a(f'v_xor_b32_dpp v{G0+4*(u+8)+jj}, v{G0+4*u+jj}, {V_SGA} quad_perm:[0,1,3,2] row_mask:0xf bank_mask:0xf')
for u in range(16):
    for jj in range(4):
        a(f'v_xor_b32 v{G0+4*(u+16)+jj}, v{G0+4*u+jj}, {V_SGB}')
XA = 104
a(f'v_and_b32 v3, 31, {V_L}')
a('v_and_b32 v4, 15, v3')
a(f'v_xor_b32 v4, v4, {V_H}')
a('v_lshlrev_b32 v4, 4, v4')
a(f'v_lshl_or_b32 v{XA}, v3, 10, v4')
for u7 in range(1, 8):
    a(f'v_xor_b32 v{XA+u7}, {u7 << 5}, v{XA}')
V_XTO = 'v28'
a(f'v_lshlrev_b32 {V_XTO}, 5, {V_KF}')
a(f'v_lshl_add_u32 {V_XTO}, {V_H}, 4, {V_XTO}')
a(f's_lshl_b32 s67, {S_I}, 15')
a(f's_add_u32 s67, s67, {XT}')
a('s_add_u32 s68, s67, 16384')

a('s_waitcnt vmcnt(24)')
stamp(2)
a(f's_or_b32 s51, s2, {S_W}')
a('s_cmp_lg_u32 s51, 0')
a('s_cbranch_scc1 L_noflag')
a('v_mov_b32 v3, 1')
a('v_mov_b32 v4, 0')
a('s_mov_b64 exec, 1')
a(f'buffer_store_dword v3, v4, {srd(SRD_DBG)}, 0 offen sc1')
a('s_mov_b64 exec, -1')
a('L_noflag:')
a('s_barrier')
ACC1 = 112
NB = 8
toks = {}
def xread(u):
    a(f'ds_read_b128 {ar(4*(u%NB))}, v{XA+(u&7)} offset:{XL + 256*(u>>3)}')
    toks[u] = lg.issue()
for u in range(NB):
    xread(u)

SF = 72
stat = []
S_ = stat.append
for r in range(2):
    for q in range(4):
        S_(f'v_lshlrev_b32 v{SF+8*r+2*q}, 16, v{ST+4*r+q}')
        S_(f'v_and_b32 v{SF+8*r+2*q+1}, 0xffff0000, v{ST+4*r+q}')
SA = 88
for r in range(2):
    S_(f'v_add_f32 v{SA+r}, v{SF+8*r}, v{SF+8*r+1}')
for q in range(2, 8):
    for r in range(2):
        S_(f'v_add_f32 v{SA+r}, v{SA+r}, v{SF+8*r+q}')
def wavered(base):
    for m in ('quad_perm:[1,0,3,2] row_mask:0xf bank_mask:0xf', 'quad_perm:[2,3,0,1] row_mask:0xf bank_mask:0xf',
              'row_half_mirror row_mask:0xf bank_mask:0xf', 'row_mirror row_mask:0xf bank_mask:0xf',
              'row_bcast:15 row_mask:0xa bank_mask:0xf', 'row_bcast:31 row_mask:0xc bank_mask:0xf'):
        for r in range(2):
            S_(f'v_add_f32_dpp v{base+r}, v{base+r}, v{base+r} {m}')
wavered(SA)
for r in range(2):
    S_(f'v_mul_f32 v{SA+r}, {hx(1/512)}, v{SA+r}')
for r in range(2):
    S_(f'v_readlane_b32 s{51+r}, v{SA+r}, 63')
for q in range(8):
    for r in range(2):
        S_(f'v_subrev_f32 v{SF+8*r+q}, s{51+r}, v{SF+8*r+q}')
for r in range(2):
    S_(f'v_mul_f32 v{SA+r}, v{SF+8*r}, v{SF+8*r}')
for q in range(1, 8):
    for r in range(2):
        S_(f'v_fmac_f32 v{SA+r}, v{SF+8*r+q}, v{SF+8*r+q}')
wavered(SA)


def rstd_seq(vs, emit, scale=1 / 512):
    for v in vs:
        emit(f'v_mul_f32 {v}, {hx(scale)}, {v}')
    for v in vs:
        emit(f'v_cvt_pk_bf16_f32 {v}, {v}, {v}')
    for v in vs:
        emit(f'v_lshlrev_b32 {v}, 16, {v}')
    for v in vs:
        emit(f'v_add_f32 {v}, {hx(1e-5)}, {v}')
    for v in vs:
        emit(f'v_cvt_pk_bf16_f32 {v}, {v}, {v}')
    for v in vs:
        emit(f'v_lshlrev_b32 {v}, 16, {v}')
    for v in vs:
        emit(f'v_sqrt_f32 {v}, {v}')
    for v in vs:
        emit(f'v_cvt_pk_bf16_f32 {v}, {v}, {v}')
    for v in vs:
        emit(f'v_lshlrev_b32 {v}, 16, {v}')
    for v in vs:
        emit(f'v_rcp_f32 {v}, {v}')


rstd_seq([f'v{SA}', f'v{SA+1}'], S_)
WP = 56
wpk = []
for e in range(2):
    for b in range(4):
        wpk.append(f'v_lshl_or_b32 v{WP+4*e+b}, v{WRAW+8*e+2*b+1}, 16, v{WRAW+8*e+2*b}')

a('s_waitcnt vmcnt(22)')
si = 0
for u in range(32):
    lg.wait(toks[u])
    c = '0' if u == 0 else vr(ACC1, 16)
    a(f'v_mfma_f32_32x32x16_bf16 {vr(ACC1,16)}, {ar(4*(u%NB))}, {vr(G0+4*u)}, {c}')
    if u + NB < 32:
        xread(u + NB)
    for _ in range(4):
        if si < len(stat):
            a(stat[si]); si += 1
while si < len(stat):
    a(stat[si]); si += 1
a('s_lshr_b32 s51, s56, 8')
a(f's_add_u32 s51, s51, {RS1}')
a('v_mov_b32 v4, 0')
a('s_mov_b32 exec_lo, 0')
a('s_brev_b32 exec_hi, 1')
a(f'buffer_store_dwordx2 v[{SA}:{SA+1}], v4, {srd(SRD_WS)}, s51 offen sc1')
a('s_mov_b64 exec, -1')
for r in range(16):
    a(f'v_mul_f32 v{ACC1+r}, {V_SC}, v{ACC1+r}')
for r in range(8):
    a(f'v_cvt_pk_bf16_f32 v{ACC1+r}, v{ACC1+2*r}, v{ACC1+2*r+1}')
a(f'buffer_store_dwordx4 {vr(ACC1)}, {V_XTO}, {srd(SRD_WS)}, s67 offen sc1')
a(f'buffer_store_dwordx4 {vr(ACC1+4)}, {V_XTO}, {srd(SRD_WS)}, s68 offen sc1')
a('s_waitcnt vmcnt(9)')
for t in wpk:
    a(t)
a(f'buffer_store_dwordx4 {vr(WP)}, {V_WS}, {srd(SRD_WS)}, s64 offen sc1')
a(f's_add_u32 s64, s64, {16*8192}')
a(f'buffer_store_dwordx4 {vr(WP+4)}, {V_WS}, {srd(SRD_WS)}, s64 offen sc1')
a('v_mov_b32 v4, 0')
a(f'buffer_load_dword v3, v4, {srd(SRD_DBG)}, 0 offen sc1')
a('s_waitcnt vmcnt(0)')
vm.sync0()
a('L_flagchk:')
a('v_cmp_ne_u32 vcc, 1, v3')
a('s_cbranch_vccz L_flagok')
a(f's_sub_u32 {S_TMO}, {S_TMO}, 1')
a('s_cbranch_scc1 L_flagtmo')
a(f'buffer_load_dword v3, v4, {srd(SRD_DBG)}, 0 offen sc1')
a('s_waitcnt vmcnt(0)')
a('s_branch L_flagchk')
a('L_flagtmo:')
a(f's_mov_b32 {S_TMO}, 0')
a('L_flagok:')
a('s_barrier')
S_SH = 's69'
a(f's_lshl_b32 {S_SH}, {S_X8}, 8')
a(f's_add_u32 s51, {S_SH}, {CNT + C_B1*256}')
arrive('s51')
stamp(3)

V_TRS = 'v29'
def tr_base(dst, pitch_shift, sig):
    a(f'v_lshrrev_b32 v3, 5, {V_L}')
    a(f'v_bfe_u32 v4, {V_L}, 2, 2')
    a('v_lshl_add_u32 v3, v3, 3, v4')
    a(f'v_lshlrev_b32 {dst}, {pitch_shift}, v3')
    a(f'v_and_b32 v3, 16, {V_L}')
    a(f'v_lshl_add_u32 {dst}, v3, 1, {dst}')
    if sig:
        a(f'v_and_b32 v3, 1, {V_L}')
        a(f'v_lshl_add_u32 {dst}, v3, 4, {dst}')
        a(f'v_and_b32 v3, 2, {V_L}')
        a(f'v_lshl_add_u32 {dst}, v3, 2, {dst}')
    else:
        a(f'v_and_b32 v3, 3, {V_L}')
        a(f'v_lshl_add_u32 {dst}, v3, 3, {dst}')


a(f's_cmp_ge_u32 {S_I}, 44')
a('s_cbranch_scc1 L_role_f')
tr_base(V_TRS, 6, True)
lg.sync0()
toks = {}
NB2 = 6
def w1read(u):
    b = 4 * (u % NB2)
    a(f'ds_read_b64_tr_b16 {ar(b,2)}, {V_TRS} offset:{RL + 1024*u}')
    a(f'ds_read_b64_tr_b16 {ar(b+2,2)}, {V_TRS} offset:{RL + 1024*u + 256}')
    toks[u] = lg.issue(2)
for u in range(NB2):
    w1read(u)
a(f's_or_b32 s51, {S_C}, {S_W}')
a(f'v_or_b32 v3, s51, {V_H}')
a('v_cmp_eq_u32 vcc, 0, v3')
a(f'v_mov_b32 v13, {hx(1/16)}')
a(f'v_mov_b32 v14, {hx(1/16/math.sqrt(2))}')
a('v_cndmask_b32 v15, v13, 0, vcc')
a('v_cndmask_b32 v14, v13, v14, vcc')
a(f's_lshl_b32 s51, {S_C}, 2')
a(f's_add_u32 s51, s51, {S_W}')
a('s_lshl_b32 s51, s51, 11')
a(f's_lshl_b32 s52, {S_I}, 15')
a('s_add_u32 s51, s51, s52')
a(f's_add_u32 s51, s51, {WALL}')
for u in range(32):
    lg.wait(toks[u])
    c = '0' if u == 0 else vr(ACC1, 16)
    a(f'v_mfma_f32_32x32x16_bf16 {vr(ACC1,16)}, {vr(G0+4*u)}, {ar(4*(u%NB2))}, {c}')
    if u + NB2 < 32:
        w1read(u + NB2)
for r in range(16):
    s = 'v15' if r == 0 else ('v14' if r == 1 else 'v13')
    a(f'v_mul_f32 v{ACC1+r}, {s}, v{ACC1+r}')
for r in range(8):
    a(f'v_cvt_pk_bf16_f32 v{ACC1+r}, v{ACC1+2*r}, v{ACC1+2*r+1}')
a(f'buffer_store_dwordx4 {vr(ACC1)}, {V_L16}, {srd(SRD_WS)}, s51 offen sc1')
a(f'buffer_store_dwordx4 {vr(ACC1+4)}, {V_L16}, {srd(SRD_WS)}, s51 offen offset:1024 sc1')
a('s_branch L_role_done')
a('L_role_f:')
tr_base(V_TRS, 7, True)
a(f's_lshl_b32 s51, {S_W}, 13')
a(f'v_add_u32 {V_TRS}, s51, {V_TRS}')
for un in range(3):
    for T in range(2):
        b = 32 + 8 * un + 4 * T
        a(f'ds_read_b64_tr_b16 {vr(b,2)}, {V_TRS} offset:{RL + 2048*un + 64*T}')
        a(f'ds_read_b64_tr_b16 {vr(b+2,2)}, {V_TRS} offset:{RL + 2048*un + 64*T + 512}')
a(f's_lshl_b32 s51, {S_GW}, 11')
a(f's_add_u32 s51, s51, {W2F}')
a('s_waitcnt lgkmcnt(0)')
for un in range(3):
    if un:
        a(f's_add_u32 s51, s51, {320*2048}')
    for T in range(2):
        a(f'buffer_store_dwordx4 {vr(32+8*un+4*T)}, {V_L16}, {srd(SRD_WS)}, s51 offen offset:{1024*T} sc1')
a(f's_cmp_ge_u32 {S_GW}, 256')
a('s_cbranch_scc1 L_role_done')
a(f's_lshr_b32 s51, {S_GW}, 4')
a('s_lshl_b32 s52, s51, 5')
a(f'v_add_u32 v3, s52, {V_SIG}')
a('v_cvt_f32_u32 v13, v3')
a(f'v_mul_f32 v13, {hx(1/512)}, v13')
a(f's_and_b32 s52, {S_GW}, 15')
a('s_lshl_b32 s53, s52, 4')
a(f'v_lshl_add_u32 v4, {V_H}, 2, s53')
a('v_cvt_f32_u32 v4, v4')
a('v_mul_f32 v14, v13, v4')
for f in range(2):
    for jj in range(4):
        kk = 8 * f + jj
        if kk == 0:
            a('v_mov_b32 v64, v14')
        else:
            a(f'v_fmamk_f32 v{64+4*f+jj}, v13, {hx(float(kk))}, v14')
for q in range(8):
    a(f'v_cos_f32 v{72+q}, v{64+q}')
    a(f'v_sin_f32 v{64+q}, v{64+q}')
for q in range(8):
    a(f'v_cvt_pk_bf16_f32 v{80+q}, v{72+q}, -v{64+q}')
a('v_and_b32 v3, 1, v3')
a('v_lshlrev_b32 v3, 31, v3')
a('v_or_b32 v3, 0x3f353f35, v3')
a(f'v_or_b32 v4, s52, {V_H}')
a('v_cmp_eq_u32 vcc, 0, v4')
a('v_cndmask_b32 v80, v80, v3, vcc')
a('s_add_u32 s51, s51, 44')
a('s_lshl_b32 s51, s51, 15')
a('s_lshl_b32 s52, s52, 11')
a('s_add_u32 s51, s51, s52')
a(f's_add_u32 s51, s51, {WALL}')
a(f'buffer_store_dwordx4 {vr(80)}, {V_L16}, {srd(SRD_WS)}, s51 offen sc1')
a(f'buffer_store_dwordx4 {vr(84)}, {V_L16}, {srd(SRD_WS)}, s51 offen offset:1024 sc1')
a('L_role_done:')
a('s_nop 7')
lg.sync0()

C1, S1, N1, C2, S2, N2 = 128, 136, 144, 152, 160, 168
TC, TS, UC, US = 176, 184, 192, 200
V_A, V_G = 'v13', 'v14'
a(f'v_and_b32 {V_A}, 15, {V_L}')
a(f'v_lshrrev_b32 {V_G}, 4, {V_L}')
a(f's_lshl_b32 s51, {S_W}, 4')
a(f'v_add_u32 v3, s51, {V_A}')
a('v_cvt_f32_u32 v15, v3')
a(f'v_cvt_f32_u32 v16, {V_G}')
a(f'v_cvt_f32_u32 v17, {V_A}')
T0 = 32


def sincos(step, base, offs, cdst, sdst, pack, scale=None):
    n = len(offs)
    for q, o in enumerate(offs):
        if o == 0:
            a(f'v_mov_b32 v{T0+q}, {base}')
        else:
            a(f'v_fmamk_f32 v{T0+q}, {step}, {hx(float(o))}, {base}')
    if pack:
        for q in range(n):
            a(f'v_cos_f32 v{T0+n+q}, v{T0+q}')
            a(f'v_sin_f32 v{T0+q}, v{T0+q}')
        for q in range(n // 2):
            a(f'v_cvt_pk_bf16_f32 v{cdst+q}, v{T0+n+2*q}, v{T0+n+2*q+1}')
            a(f'v_cvt_pk_bf16_f32 v{sdst+q}, v{T0+2*q}, v{T0+2*q+1}')
    else:
        for q in range(n):
            a(f'v_cos_f32 v{cdst+q}, v{T0+q}')
            a(f'v_sin_f32 v{sdst+q}, v{T0+q}')
        if scale:
            for q in range(n):
                a(f'v_mul_f32 v{cdst+q}, {hx(scale)}, v{cdst+q}')
                a(f'v_mul_f32 v{sdst+q}, {hx(scale)}, v{sdst+q}')


a(f'v_mul_f32 v18, {hx(1/64)}, v15')
a(f'v_mul_f32 v19, {hx(8.0)}, v16')
a('v_mul_f32 v19, v19, v18')
sincos('v18', 'v19', list(range(8)), C1, S1, True)
a(f'v_mul_f32 v18, {hx(1/32)}, v17')
a('v_mul_f32 v20, 4.0, v16')
a('v_mul_f32 v19, v20, v18')
sincos('v18', 'v19', [0, 1, 2, 3, 16, 17, 18, 19], C2, S2, True)
a(f'v_bfe_i32 v21, {V_A}, 0, 1')
a('v_and_b32 v21, 0x80008000, v21')
for q in range(4):
    a(f'v_xor_b32 v{C1+4+q}, v21, v{C1+q}')
    a(f'v_xor_b32 v{S1+4+q}, v21, v{S1+q}')
    a(f'v_xor_b32 v{C2+4+q}, 0x80000000, v{C2+q}')
    a(f'v_xor_b32 v{S2+4+q}, 0x80000000, v{S2+q}')
for q in range(8):
    a(f'v_xor_b32 v{N1+q}, 0x80008000, v{S1+q}')
    a(f'v_xor_b32 v{N2+q}, 0x80008000, v{S2+q}')
a('s_waitcnt vmcnt(0)')
vm.sync0()
a('s_barrier')
a(f's_add_u32 s51, {S_SH}, {CNT + C_B1B*256}')
arrive('s51')
stamp(4)
a(f'v_mul_f32 v18, {hx(1/2048)}, v15')
a('v_mul_f32 v19, v20, v18')
sincos('v18', 'v19', [0, 1, 2, 3, 16, 17, 18, 19], TC, TS, False)
a(f's_lshl_b32 s51, {S_W}, 4')
a('v_cvt_f32_u32 v22, s51')
a('v_add_f32 v22, v22, v20')
a(f'v_mul_f32 v18, {hx(1/2048)}, v17')
a('v_mul_f32 v19, v22, v18')
sincos('v18', 'v19', [0, 1, 2, 3], UC, US, False, 1 / 2048)
a(f'v_add_f32 v18, {hx(16/2048)}, v18')
a('v_mul_f32 v19, v22, v18')
sincos('v18', 'v19', [0, 1, 2, 3], UC + 4, US + 4, False, 1 / 2048)

S_J = 's50'
a(f's_lshl_b32 {S_J}, {S_X8}, 5')
a(f's_add_u32 {S_J}, {S_J}, {S_IDX}')
a(f's_lshl_b32 s52, {S_J}, 1')
a('s_add_u32 s53, s52, 1')
a(f's_cmp_eq_u32 {S_J}, 0')
a('s_cselect_b32 s52, 1, s52')
a('s_cselect_b32 s53, 0, s53')
a('s_cselect_b32 s54, 0, -1')
a('s_cselect_b32 s55, 0, 1.0')
a('s_lshl_b32 s56, s52, 5')
a(f's_add_u32 s56, s56, {XT}')
a('s_lshl_b32 s57, s53, 5')
a(f's_add_u32 s57, s57, {XT}')
a('s_lshl_b32 s58, s52, 6')
a(f's_add_u32 s58, s58, {HF}')
a('s_lshl_b32 s59, s53, 6')
a(f's_add_u32 s59, s59, {HF}')
a(f's_lshl_b32 s60, {S_J}, 13')
a(f's_lshl_b32 s61, {S_W}, 11')
a('s_add_u32 s60, s60, s61')
a(f's_add_u32 s60, s60, {WT}')
a(f's_mov_b32 s61, {RS1}')
V_XO, V_RO, V_HO, V_VW, V_VR, V_TW, V_TR = 'v15', 'v16', 'v17', 'v18', 'v19', 'v20', 'v21'
a(f's_lshl_b32 s51, {S_W}, 4')
a(f'v_add_u32 v3, s51, {V_A}')
a(f'v_lshlrev_b32 {V_HO}, 15, v3')
a(f'v_lshrrev_b32 v4, 1, {V_G}')
a(f'v_lshl_add_u32 {V_XO}, v4, 14, {V_HO}')
a(f'v_and_b32 v4, 1, {V_G}')
a(f'v_lshl_add_u32 {V_XO}, v4, 4, {V_XO}')
a(f'v_lshl_add_u32 {V_HO}, {V_G}, 4, {V_HO}')
a(f'v_lshlrev_b32 {V_RO}, 7, v3')
a(f'v_lshl_add_u32 {V_RO}, {V_G}, 5, {V_RO}')
VL, TL, PITCH = 0, 8192, 144
PL = 32 * PITCH
a(f'v_lshlrev_b32 {V_VW}, 6, v3')
a(f'v_lshl_add_u32 {V_VW}, {V_G}, 4, {V_VW}')
a(f'v_bfe_u32 v4, {V_L}, 2, 2')
a(f'v_lshl_add_u32 v4, {V_G}, 3, v4')
a(f'v_lshlrev_b32 {V_VR}, 6, v4')
a(f'v_and_b32 v4, 3, {V_L}')
a(f'v_lshl_add_u32 {V_VR}, v4, 3, {V_VR}')
a(f'v_mul_u32_u24 {V_TW}, {PITCH}, {V_A}')
a(f'v_lshl_add_u32 {V_TW}, {V_G}, 3, {V_TW}')
a(f's_lshl_b32 s51, {S_W}, 5')
a(f'v_add_u32 {V_TW}, s51, {V_TW}')
a(f'v_and_b32 v3, 12, {V_A}')
a(f'v_lshl_add_u32 v3, v3, 1, v4')
a(f'v_mul_u32_u24 {V_TR}, {PITCH}, v3')
a(f'v_lshl_add_u32 {V_TR}, {V_G}, 4, {V_TR}')
S_SB, S_NT = 's62', 's63'
a(f's_lshr_b32 {S_SB}, {S_X8}, 1')
a(f's_lshl_b32 {S_SB}, {S_SB}, 2')
a(f's_lshr_b32 s51, {S_IDX}, 3')
a(f's_add_u32 {S_SB}, {S_SB}, s51')
a(f's_and_b32 {S_NT}, {S_X8}, 1')
a(f's_lshl_b32 {S_NT}, {S_NT}, 3')
a(f's_and_b32 s51, {S_IDX}, 7')
a(f's_add_u32 {S_NT}, {S_NT}, s51')

a(f's_mov_b32 s51, {CNT + C_B1*256}')
poll('s51', 8, 32)
a('s_barrier')
vm.sync0()
stamp(5)

XAr, XBr, RSr, WPr = 24, 28, 32, 40
a(f'buffer_load_dwordx4 {vr(XAr)}, {V_XO}, {srd(SRD_WS)}, s56 offen sc1')
a(f'buffer_load_dwordx4 {vr(XBr)}, {V_XO}, {srd(SRD_WS)}, s57 offen sc1')
a(f'buffer_load_dwordx4 {vr(RSr)}, {V_RO}, {srd(SRD_WS)}, s61 offen sc1')
a(f'buffer_load_dwordx4 {vr(RSr+4)}, {V_RO}, {srd(SRD_WS)}, s61 offen offset:16 sc1')
t_x = vm.issue(4)
a(f'buffer_load_dwordx4 {vr(WPr)}, {V_L16}, {srd(SRD_WS)}, s60 offen sc1')
a(f'buffer_load_dwordx4 {vr(WPr+4)}, {V_L16}, {srd(SRD_WS)}, s60 offen offset:1024 sc1')
t_w = vm.issue(2)
XA_, XB_ = 48, 56
vm.wait(t_x)
for q in range(4):
    a(f'v_lshlrev_b32 v{XA_+2*q}, 16, v{XAr+q}')
    a(f'v_and_b32 v{XA_+2*q+1}, 0xffff0000, v{XAr+q}')
    a(f'v_lshlrev_b32 v{XB_+2*q}, 16, v{XBr+q}')
    a(f'v_and_b32 v{XB_+2*q+1}, 0xffff0000, v{XBr+q}')
for q in range(4):
    a(f'v_pk_mul_f32 {vr(64+2*q,2)}, {vr(XA_+2*q,2)}, {vr(RSr+2*q,2)}')
    a(f'v_pk_mul_f32 {vr(72+2*q,2)}, {vr(XB_+2*q,2)}, {vr(RSr+2*q,2)}')
for q in range(4):
    a(f'v_cvt_pk_bf16_f32 v{XAr+q}, v{64+2*q}, v{65+2*q}')
    a(f'v_cvt_pk_bf16_f32 v{XBr+q}, v{72+2*q}, v{73+2*q}')
a(f'ds_write_b128 {V_VW}, {vr(XAr)} offset:{VL}')
for q in range(4):
    a(f'v_and_b32 v{XBr+q}, s54, v{XBr+q}')
a(f'ds_write_b128 {V_VW}, {vr(XBr)} offset:{VL+4096}')
a('s_waitcnt lgkmcnt(0)')
a('s_barrier')
lg.sync0()
AF = 64
tk = {}
for t in range(2):
    for u in range(2):
        for pl in range(2):
            b = AF + 16 * t + 8 * u + 4 * pl
            for rd in range(2):
                a(f'ds_read_b64_tr_b16 {vr(b+2*rd,2)}, {V_VR} offset:{VL + pl*4096 + u*2048 + rd*256 + t*32}')
            tk[t, u, pl] = lg.issue(2)
a(f'v_and_b32 v4, 7, {V_L}')
a('v_lshlrev_b32 v4, 8, v4')
a(f's_mov_b32 s51, {CNT + C_B1B*256}')
a(f'buffer_load_dword v22, v4, {srd(SRD_WS)}, s51 offen sc1')
t_b1b = vm.issue()
DR, DI = 96, 104
def mf16(d, A, B, first):
    a(f'v_mfma_f32_16x16x32_bf16 {vr(d)}, {vr(A)}, {vr(B)}, {"0" if first else vr(d)}')
for t in range(2):
    for u in range(2):
        ar_, ai_ = AF + 16 * t + 8 * u, AF + 16 * t + 8 * u + 4
        lg.wait(tk[t, u, 0])
        mf16(DR + 4 * t, ar_, C1 + 4 * u, u == 0)
        mf16(DI + 4 * t, ar_, N1 + 4 * u, u == 0)
        lg.wait(tk[t, u, 1])
        mf16(DR + 4 * t, ai_, S1 + 4 * u, False)
        mf16(DI + 4 * t, ai_, C1 + 4 * u, False)
WRf, WIf = 112, 120
vm.wait(t_w)
for q in range(8):
    a(f'v_lshlrev_b32 v{WRf+q}, 16, v{WPr+q}')
    a(f'v_and_b32 v{WIf+q}, 0xffff0000, v{WPr+q}')


def cmul(cr, ci, conj, outr, outi):
    M = 64
    for q in range(4):
        a(f'v_pk_mul_f32 {vr(M+2*q,2)}, {vr(DR+2*q,2)}, {vr(cr+2*q,2)}')
        a(f'v_pk_mul_f32 {vr(M+8+2*q,2)}, {vr(DI+2*q,2)}, {vr(cr+2*q,2)}')
    neg = 'neg_lo:[1,0,0] neg_hi:[1,0,0]'
    for q in range(4):
        a(f'v_pk_fma_f32 {vr(M+2*q,2)}, {vr(DI+2*q,2)}, {vr(ci+2*q,2)}, {vr(M+2*q,2)} {"" if conj else neg}')
        a(f'v_pk_fma_f32 {vr(M+8+2*q,2)}, {vr(DR+2*q,2)}, {vr(ci+2*q,2)}, {vr(M+8+2*q,2)} {neg if conj else ""}')
    for q in range(4):
        a(f'v_cvt_pk_bf16_f32 v{outr+q}, v{M+2*q}, v{M+2*q+1}')
        a(f'v_cvt_pk_bf16_f32 v{outi+q}, v{M+8+2*q}, v{M+8+2*q+1}')


PR, PI = 80, 84
cmul(TC, TS, True, PR, PI)
for t in range(2):
    mf16(DR + 4 * t, C2 + 4 * t, PR, True)
    mf16(DI + 4 * t, C2 + 4 * t, PI, True)
for t in range(2):
    mf16(DR + 4 * t, S2 + 4 * t, PI, False)
    mf16(DI + 4 * t, N2 + 4 * t, PR, False)
cmul(WRf, WIf, False, PR, PI)
for t in range(2):
    mf16(DR + 4 * t, PR, C2 + 4 * t, True)
    mf16(DI + 4 * t, PI, C2 + 4 * t, True)
for t in range(2):
    mf16(DR + 4 * t, PI, N2 + 4 * t, False)
    mf16(DI + 4 * t, PR, S2 + 4 * t, False)
cmul(UC, US, False, PR, PI)
for t in range(2):
    a(f'ds_write_b64 {V_TW}, {vr(PR+2*t,2)} offset:{TL + 16*t*PITCH}')
    a(f'ds_write_b64 {V_TW}, {vr(PI+2*t,2)} offset:{TL + PL + 16*t*PITCH}')
a('s_waitcnt lgkmcnt(0)')
a('s_barrier')
lg.sync0()
for t in range(2):
    for u in range(2):
        for pl in range(2):
            b = AF + 16 * t + 8 * u + 4 * pl
            a(f'ds_read_b128 {vr(b)}, {V_TR} offset:{TL + pl*PL + 4*t*PITCH + 64*u}')
            tk[t, u, pl] = lg.issue()
for t in range(2):
    for u in range(2):
        ar_, ai_ = AF + 16 * t + 8 * u, AF + 16 * t + 8 * u + 4
        lg.wait(tk[t, u, 0])
        mf16(DR + 4 * t, ar_, C1 + 4 * u, u == 0)
        mf16(DI + 4 * t, ar_, S1 + 4 * u, u == 0)
        lg.wait(tk[t, u, 1])
        mf16(DR + 4 * t, ai_, N1 + 4 * u, False)
        mf16(DI + 4 * t, ai_, C1 + 4 * u, False)
for q in range(8):
    a(f'v_add_f32 v{XA_+q}, v{XA_+q}, v{DR+q}')
    a(f'v_fma_f32 v{XB_+q}, v{DI+q}, s55, v{XB_+q}')
for q in range(4):
    a(f'v_cvt_pk_bf16_f32 v{XAr+q}, v{XA_+2*q}, v{XA_+2*q+1}')
    a(f'v_cvt_pk_bf16_f32 v{XBr+q}, v{XB_+2*q}, v{XB_+2*q+1}')
a(f'buffer_store_dwordx4 {vr(XAr)}, {V_HO}, {srd(SRD_WS)}, s58 offen sc1')
a(f'buffer_store_dwordx4 {vr(XBr)}, {V_HO}, {srd(SRD_WS)}, s59 offen sc1')
t_hf = vm.issue(2)
stamp(6)
vm.wait(t_b1b)
a('v_cmp_ne_u32 vcc, 32, v22')
a('s_cbranch_vccz L_b1b_ok')
a(f's_mov_b32 s51, {CNT + C_B1B*256}')
poll('s51', 8, 32, only_w0=False)
a('L_b1b_ok:')

S_ST, S_DT = 's64', 's65'
a(f's_lshr_b32 s51, {S_IDX}, 4')
a(f's_lshl_b32 {S_ST}, {S_X8}, 1')
a(f's_add_u32 {S_ST}, {S_ST}, s51')
a(f's_mov_b32 s66, {S_ST}')
a(f's_lshl_b32 {S_ST}, {S_ST}, 2')
a(f's_bfe_u32 s51, {S_IDX}, 0x10003')
a(f's_add_u32 {S_ST}, {S_ST}, s51')
a(f's_and_b32 {S_DT}, {S_IDX}, 7')
a(f's_min_u32 s51, {S_NT}, 14')
a('s_lshl_b32 s51, s51, 2')
a(f's_add_u32 s51, s51, {S_W}')
a('s_lshl_b32 s51, s51, 15')
a(f's_add_u32 s51, s51, {WALL}')
for qq in range(4):
    a(f's_add_u32 s52, {S_W}, {qq}')
    a('s_and_b32 s52, s52, 3')
    a('s_lshl_b32 s52, s52, 13')
    a('s_add_u32 s52, s52, s51')
    for e in range(8):
        if e == 4:
            a('s_add_u32 s52, s52, 4096')
        a(f'buffer_load_dwordx4 {ar(4*(8*qq+e))}, {V_L16}, {srd(SRD_WS)}, s52 offen offset:{1024*(e&3)} sc1')
t_wf = vm.issue(32)
vm.wait(t_hf)
a('s_barrier')
a(f's_add_u32 s51, {S_SH}, {CNT + C_B2*256}')
arrive('s51')
stamp(7)


def w2reg(kk, mt):
    f = 2 * kk + mt
    return ar(128 + 4 * f) if f < 32 else vr(208 + 4 * (f - 32))


S_W2 = 's67'
a(f's_mul_i32 {S_W2}, {S_W}, {22*16384}')
a(f's_lshl_b32 s51, {S_DT}, 11')
a(f's_add_u32 {S_W2}, {S_W2}, s51')
a(f's_add_u32 {S_W2}, {S_W2}, {W2F}')
w2_next = [0]
def w2load(n):
    for _ in range(n):
        kk = w2_next[0]
        if kk >= 22:
            return
        for mt in range(2):
            a(f'buffer_load_dwordx4 {w2reg(kk,mt)}, {V_L16}, {srd(SRD_WS)}, {S_W2} offen offset:{1024*mt} sc1')
        vm.issue(2)
        a(f's_add_u32 {S_W2}, {S_W2}, 16384')
        w2_next[0] += 1


w2load(4)
B1R = 104
a(f's_lshl_b32 s51, {S_NT}, 8')
a(f's_lshl_b32 s52, {S_W}, 6')
a('s_add_u32 s51, s51, s52')
a(f'v_lshrrev_b32 {V_H}, 5, {V_L}')
a(f'v_lshlrev_b32 v3, 4, {V_H}')
a(f'buffer_load_dwordx4 {vr(B1R)}, v3, {srd(SRD_B1)}, s51 offen')
a(f'buffer_load_dwordx4 {vr(B1R+4)}, v3, {srd(SRD_B1)}, s51 offen offset:32')
t_b1 = vm.issue(2)
BQ = 100
tr_base(f'v{BQ}', 6, False)
a(f'v_mov_b32 v5, v{BQ}')
for qq in range(4):
    a(f's_add_u32 s52, {S_W}, {qq}')
    a('s_and_b32 s52, s52, 3')
    a('s_lshl_b32 s52, s52, 13')
    a(f'v_add_u32 v{BQ+qq}, s52, v5')
V_DCM, V_LO, V_HI, V_SW, V_SR, V_C16 = 'v7', 'v8', 'v9', 'v10', 'v11', 'v12'
a(f'v_or_b32 v3, {S_W}, {V_H}')
a('v_cmp_eq_u32 vcc, 0, v3')
a('v_mov_b32 v4, 0xffff0000')
a(f'v_cndmask_b32 {V_DCM}, -1, v4, vcc')
SSQL = 131072
a(f's_lshl_b32 s51, {S_W}, 8')
a(f's_add_u32 s51, s51, {SSQL}')
a(f'v_lshl_add_u32 {V_SW}, {V_L}, 2, s51')
a(f'v_and_b32 v3, 31, {V_L}')
a(f'v_lshlrev_b32 {V_SR}, 2, v3')
a(f'v_add_u32 {V_SR}, {SSQL}, {V_SR}')
a(f'v_and_b32 v3, 1, {V_L}')
a('v_cmp_ne_u32 s[56:57], 0, v3')
a(f'v_and_b32 v3, 2, {V_L}')
a('v_cmp_ne_u32 s[58:59], 0, v3')
a(f's_cmp_ge_u32 {S_NT}, 11')
a('s_cselect_b64 s[60:61], -1, 0')
a('s_cselect_b32 s51, 1.0, 0')
a('s_cselect_b32 s52, 1.0, 0x7f800000')
a(f'v_mov_b32 {V_LO}, s51')
a(f'v_mov_b32 {V_HI}, s52')
a(f'v_mov_b32 {V_C16}, {hx(1/16)}')
S_OB, S_OS = 's54', 's55'
a(f's_mov_b32 {S_OS}, {88*1024}')
a(f's_cmov_b32 {S_OS}, 32768')
a(f's_mov_b32 s51, {HB}')
a(f's_cmov_b32 s51, {HH - 88*1024}')
a(f's_lshl_b32 s52, {S_SB}, 2')
a(f's_mul_i32 s52, s52, {S_OS}')
a('s_add_u32 s51, s51, s52')
a(f's_lshl_b32 s52, {S_NT}, 13')
a('s_add_u32 s51, s51, s52')
a(f's_lshl_b32 s52, {S_W}, 11')
a(f's_add_u32 {S_OB}, s51, s52')
S_C3 = 's53'
a(f's_lshl_b32 {S_C3}, {S_SB}, 2')
a(f's_add_u32 {S_C3}, {S_C3}, {S_W}')
a(f's_lshl_b32 {S_C3}, {S_C3}, 8')
a(f's_add_u32 {S_C3}, {S_C3}, {CNT + C_B3A*256}')
B1F = 76
vm.wait(t_b1)
for q in range(8):
    a(f'v_lshlrev_b32 v{B1F+2*q}, 16, v{B1R+q}')
    a(f'v_and_b32 v{B1F+2*q+1}, 0xffff0000, v{B1R+q}')

a(f's_mov_b32 s51, {CNT + C_B2*256}')
poll('s51', 8, 32)
a('s_barrier')
stamp(8)
a(f's_cmp_eq_u32 {S_NT}, 15')
a('s_cbranch_scc1 L_p3_skip')
vm.sync0()

a(f's_lshl_b32 s51, {S_SB}, 17')
a(f's_lshl_b32 s52, {S_W}, 13')
a('s_add_u32 s51, s51, s52')
a(f's_add_u32 s51, s51, {HF}')
a('s_mov_b32 m0, s52')
t_dma = {}
for t in range(4):
    for e in range(8):
        if e == 4:
            a('s_add_u32 m0, m0, 4096')
            a('s_add_u32 s51, s51, 4096')
        a(f'buffer_load_dwordx4 {V_L16}, {srd(SRD_WS)}, s51 offen offset:{1024*(e&3)} sc1 lds')
    t_dma[t] = vm.issue(8)
    if t < 3:
        a(f's_add_u32 m0, m0, {32768-4096}')
        a(f's_add_u32 s51, s51, {32768-4096}')
ACC = [16, 32]
BB = 48
NB3 = 6
ZQ = 72
OUTP = 92
V_RS = ['v112', 'v113']
PT = 114
toks = {}
def bread(gs):
    t, s = gs >> 5, gs & 31
    b = BB + 4 * (gs % NB3)
    off = (t & 1) * 32768 + (s & 7) * 1024
    a(f'ds_read_b64_tr_b16 {vr(b,2)}, v{BQ+(s>>3)} offset:{off}')
    a(f'ds_read_b64_tr_b16 {vr(b+2,2)}, v{BQ+(s>>3)} offset:{off+256}')
    toks[gs] = lg.issue(2)


def epilogue_ops(t):
    ac = ACC[t & 1]
    rs = V_RS[t & 1]
    L = []
    for p in range(2):
        for j in range(8):
            r = ac + 8 * p + j
            L.append(f'v_fma_f32 v{r}, v{r}, {rs}, v{B1F+8*p+j}')
        for j in range(8):
            L.append(f'v_med3_f32 v{122+(j&3)}, v{ac+8*p+j}, {V_LO}, {V_HI}')
            L.append(f'v_mul_f32 v{ac+8*p+j}, v{ac+8*p+j}, v{122+(j&3)}')
        for jj in range(4):
            L.append(f'v_cvt_pk_bf16_f32 v{OUTP+4*p+jj}, v{ac+8*p+2*jj}, v{ac+8*p+2*jj+1}')
        L.append(('store', p))
    return L


t_st3 = {}
def run_epi(item, t):
    if isinstance(item, tuple):
        p = item[1]
        a(f'buffer_store_dwordx4 {vr(OUTP+4*p)}, {V_L16}, {srd(SRD_WS)}, {S_OB} offen offset:{1024*p} sc1')
        t_st3[t] = vm.issue()
        if p == 1:
            a(f's_add_u32 {S_OB}, {S_OB}, {S_OS}')
    else:
        a(item)


vm.wait(t_dma[0])
PRE = NB3 - 1
for gs in range(PRE):
    bread(gs)
pend = []
for gs in range(128):
    t, s = gs >> 5, gs & 31
    nxt = gs + PRE
    if nxt < 128:
        if nxt == 8:
            a('s_barrier')
        if nxt == 64:
            pass
        if nxt >= 64 and (nxt & 31) % 8 == 0 and (nxt >> 5) == 2:
            a(f'v_add_u32 v{BQ+((nxt&31)>>3)}, 0x10000, v{BQ+((nxt&31)>>3)}')
        bread(nxt)
    if s == 0:
        assert not any(tt <= t - 2 for _, tt in pend), 'epilogue not finished'
    if s == 12:
        assert not any(('v%d' % PT) in str(x) for x, _ in pend), 'PT still live'
    lg.wait(toks[gs])
    b = BB + 4 * (gs % NB3)
    c = '0' if s == 0 else vr(ACC[t & 1], 16)
    a(f'v_mfma_f32_32x32x16_bf16 {vr(ACC[t&1],16)}, {ar(4*s)}, {vr(b)}, {c}')
    if s < 8:
        if s == 0:
            a(f'v_and_b32 v126, {V_DCM}, v{b}')
            a(f'v_mov_b32 v127, v{b+1}')
            a(f'v_mfma_f32_4x4x4_16b_bf16 {vr(ZQ)}, {vr(b+2,2)}, {vr(b+2,2)}, 0')
            a(f'v_mfma_f32_4x4x4_16b_bf16 {vr(ZQ)}, v[126:127], v[126:127], {vr(ZQ)}')
        else:
            a(f'v_mfma_f32_4x4x4_16b_bf16 {vr(ZQ)}, {vr(b,2)}, {vr(b,2)}, {vr(ZQ)}')
            a(f'v_mfma_f32_4x4x4_16b_bf16 {vr(ZQ)}, {vr(b+2,2)}, {vr(b+2,2)}, {vr(ZQ)}')
    if s == 9:
        a(f'v_cndmask_b32 v126, v{ZQ}, v{ZQ+1}, s[56:57]')
        a(f'v_cndmask_b32 v127, v{ZQ+2}, v{ZQ+3}, s[56:57]')
        a('v_cndmask_b32 v126, v126, v127, s[58:59]')
        a(f'ds_write_b32 {V_SW}, v126 offset:{(t&1)*1024}')
        t_sw = lg.issue()
    if s == 12:
        lg.wait(t_sw)
        if t < 3:
            vm.wait(t_dma[t + 1])
        a('s_barrier')
        for w_ in range(4):
            a(f'ds_read2_b32 {vr(PT+2*w_,2)}, {V_SR} offset0:{64*w_} offset1:{64*w_+32}' if (t & 1) == 0 else
              f'ds_read2_b32 {vr(PT+2*w_,2)}, v15 offset0:{64*w_} offset1:{64*w_+32}')
        t_sr = lg.issue(4)
    if gs == 1:
        a(f'v_add_u32 v15, 1024, {V_SR}')
    if s == 16:
        lg.wait(t_sr)
        rs = V_RS[t & 1]
        L = [f'v_add_f32 v{PT+2*q}, v{PT+2*q}, v{PT+2*q+1}' for q in range(4)]
        L += [f'v_add_f32 v{PT}, v{PT}, v{PT+2}', f'v_add_f32 v{PT+4}, v{PT+4}, v{PT+6}', f'v_add_f32 {rs}, v{PT}, v{PT+4}']
        rstd_seq([rs], L.append)
        L.append(f'v_cndmask_b32 {rs}, {rs}, {V_C16}, s[60:61]')
        pend += [(x, t) for x in L]
    if s == 4 and t > 0:
        pend += [(x, t - 1) for x in epilogue_ops(t - 1)]
    k = 0
    lim = 2 if s < 8 else 3
    while pend and k < lim:
        run_epi(*pend.pop(0)); k += 1
    if gs >= 40 and gs % 6 == 0 and w2_next[0] < 14:
        w2load(1)
    if gs == 96 + 14:
        vm.wait(t_st3[1])
        arrive(S_C3, only_w0=False, tmp='v126', tmp2='v127')
while pend:
    run_epi(*pend.pop(0))
for x in epilogue_ops(3):
    run_epi(x, 3)
stamp(9)
t_last = t_st3[3]
w2_resume = w2_next[0]
w2load(22)
vm.wait(t_last)
a(f's_add_u32 {S_C3}, {S_C3}, {(C_B3B-C_B3A)*256}')
arrive(S_C3, only_w0=False)
a('s_branch L_p3_done')
a('L_p3_skip:')
w2_next[0] = 4
w2load(22)
a('L_p3_done:')
a('s_nop 7')
stamp(10)

def hreg(late, kk):
    if not late:
        return ar(4 * kk)
    return ar(88 + 4 * kk) if kk < 10 else vr(112 + 4 * (kk - 10))
AE = [16, 48]
V_HHO, V_OO, V_PW, V_PR = 'v5', 'v6', 100, 104
HP = [80, 84]
B2R, B2F = 88, 92
a(f'v_lshrrev_b32 v3, 3, {V_L}')
a(f'v_and_b32 v4, 7, {V_L}')
a(f's_lshl_b32 s51, {S_W}, 3')
a('v_add_u32 v7, s51, v3')
a('v_lshrrev_b32 v8, 1, v4')
a(f'v_lshlrev_b32 {V_HHO}, 10, v8')
a('v_and_b32 v8, 1, v4')
a(f'v_lshl_add_u32 {V_HHO}, v8, 9, {V_HHO}')
a(f'v_lshl_add_u32 {V_HHO}, v7, 4, {V_HHO}')
a(f'v_lshlrev_b32 {V_OO}, 10, v7')
a(f'v_lshl_add_u32 {V_OO}, v4, 4, {V_OO}')
a('v_lshlrev_b32 v9, 4, v4')
a(f's_lshl_b32 s52, {S_DT}, 7')
a(f'buffer_load_dwordx4 {vr(B2R)}, v9, {srd(SRD_B2)}, s52 offen')
a('v_and_b32 v8, 7, v7')
a('v_lshlrev_b32 v9, 1, v4')
a('v_xor_b32 v8, v8, v9')
a('v_lshlrev_b32 v8, 4, v8')
a(f'v_lshl_add_u32 v{V_PR}, v7, 8, v8')
a(f'v_xor_b32 v{V_PR+1}, 16, v{V_PR}')
a(f'v_and_b32 v3, 31, {V_L}')
a(f'v_lshrrev_b32 v4, 5, {V_L}')
a('v_lshlrev_b32 v4, 1, v4')
a('v_and_b32 v8, 7, v3')
a('v_xor_b32 v4, v4, v8')
a('v_lshlrev_b32 v4, 4, v4')
a('v_lshl_add_u32 v4, v3, 8, v4')
a(f's_lshl_b32 s51, {S_W}, 13')
a(f'v_add_u32 v{V_PW}, s51, v4')
a(f'v_xor_b32 v{V_PW+1}, 16, v{V_PW}')
a(f'v_xor_b32 v{V_PW+2}, 64, v{V_PW}')
a(f'v_xor_b32 v{V_PW+3}, 80, v{V_PW}')
S_HO, S_HH, S_OO = 's54', 's55', 's56'
a(f's_mul_i32 {S_HO}, {S_ST}, 88')
a(f's_mul_i32 s51, {S_W}, 22')
a(f's_add_u32 {S_HO}, {S_HO}, s51')
a(f's_lshl_b32 {S_HO}, {S_HO}, 10')
a(f's_add_u32 {S_HO}, {S_HO}, {HB}')
a(f's_lshl_b32 {S_HH}, {S_ST}, 15')
a(f's_lshl_b32 s51, {S_DT}, 12')
a(f's_add_u32 {S_HH}, {S_HH}, s51')
a(f's_add_u32 {S_HH}, {S_HH}, {HH}')
a(f's_lshl_b32 {S_OO}, {S_ST}, 15')
a(f's_lshl_b32 s51, {S_DT}, 7')
a(f's_add_u32 {S_OO}, {S_OO}, s51')
a('s_lshl_b32 s57, s66, 10')
a(f's_add_u32 s57, s57, {CNT + C_B3A*256}')


def hloads(late):
    tk_ = {}
    a(f's_add_u32 s51, {S_HO}, {2*88*1024 if late else 0}')
    for kk in range(22):
        if kk and kk % 4 == 0:
            a('s_add_u32 s51, s51, 4096')
        a(f'buffer_load_dwordx4 {hreg(late,kk)}, {V_L16}, {srd(SRD_WS)}, s51 offen offset:{1024*(kk&3)} sc1')
        tk_[kk] = vm.issue()
    a(f's_add_u32 s51, {S_HH}, {2*32768 if late else 0}')
    a(f'buffer_load_dwordx4 {vr(HP[late])}, {V_HHO}, {srd(SRD_WS)}, s51 offen sc1')
    tk_['h'] = vm.issue()
    return tk_


def p4mma(late, tk_):
    for kk in range(22):
        vm.wait(tk_[kk])
        for mt in range(2):
            d = vr(AE[late] + 16 * mt, 16)
            a(f'v_mfma_f32_32x32x16_bf16 {d}, {w2reg(kk,mt)}, {hreg(late,kk)}, {"0" if kk == 0 else d}')


def p4write(late):
    for mt in range(2):
        for p in range(2):
            for hf in range(2):
                r = AE[late] + 16 * mt + 8 * p + 4 * hf
                a(f'ds_write_b128 v{V_PW+2*p+hf}, {vr(r)} offset:{late*32768 + 128*mt}')


def p4final(late, tk_):
    R = 160
    for pp in range(4):
        for e in range(2):
            a(f'ds_read_b128 {vr(R+8*pp+4*e)}, v{V_PR+e} offset:{late*32768 + pp*8192}')
    vm.wait(tk_['h'])
    hp = HP[late]
    for q in range(4):
        a(f'v_lshlrev_b32 v{192+2*q}, 16, v{hp+q}')
        a(f'v_and_b32 v{193+2*q}, 0xffff0000, v{hp+q}')
    for q in range(4):
        a(f'v_pk_add_f32 {vr(192+2*q,2)}, {vr(192+2*q,2)}, {vr(B2F+2*q,2)}')
    a('s_waitcnt lgkmcnt(0)')
    for q in range(4):
        a(f'v_pk_add_f32 {vr(R+2*q,2)}, {vr(R+2*q,2)}, {vr(R+8+2*q,2)}')
        a(f'v_pk_add_f32 {vr(R+16+2*q,2)}, {vr(R+16+2*q,2)}, {vr(R+24+2*q,2)}')
    for q in range(4):
        a(f'v_pk_add_f32 {vr(R+2*q,2)}, {vr(R+2*q,2)}, {vr(R+16+2*q,2)}')
    for q in range(4):
        a(f'v_pk_add_f32 {vr(R+2*q,2)}, {vr(R+2*q,2)}, {vr(192+2*q,2)}')
    for q in range(4):
        a(f'v_cvt_pk_bf16_f32 v{200+q}, v{R+2*q}, v{R+2*q+1}')
    a(f's_add_u32 s51, {S_OO}, {2*32768 if late else 0}')
    a(f'buffer_store_dwordx4 {vr(200)}, {V_OO}, {srd(SRD_OUT)}, s51 offen sc1')
    vm.issue()


poll('s57', 4, 15)
a('s_waitcnt vmcnt(0)')
vm.sync0()
a('s_barrier')
stamp(11)
tkE = hloads(0)
for q in range(4):
    a(f'v_lshlrev_b32 v{B2F+2*q}, 16, v{B2R+q}')
    a(f'v_and_b32 v{B2F+2*q+1}, 0xffff0000, v{B2R+q}')
p4mma(0, tkE)
p4write(0)
a(f's_add_u32 s57, s57, {(C_B3B-C_B3A)*256}')
poll('s57', 4, 15)
a('s_waitcnt lgkmcnt(0)')
a('s_barrier')
stamp(12)
tkL = hloads(1)
p4final(0, tkE)
p4mma(1, tkL)
p4write(1)
a('s_waitcnt lgkmcnt(0)')
a('s_barrier')
p4final(1, tkL)
if PROFILE:
    a('s_waitcnt vmcnt(0)')
    stamp(13)
    a('s_lshl_b32 s51, s2, 2')
    a(f's_add_u32 s51, s51, {S_W}')
    a('s_lshl_b32 s51, s51, 6')
    a(f's_add_u32 s51, s51, {STAMP}')
    a('v_mov_b32 v4, 0')
    a('s_mov_b64 exec, 1')
    for k in range(NSTAMP):
        a(f'v_mov_b32 v3, s{72+2*k}')
        a(f'buffer_store_dword v3, v4, {srd(SRD_WS)}, s51 offen offset:{4*k}')
a('L_end:')
a('s_endpgm')

LDS = 131072 + 2048
body = a.finish(verbose=True)
hdr = open('cdna_kernels/' + NAME + '.s.ref').read().split('\n')
hdr = [l for l in hdr if l.startswith(';') and '@launch' not in l and 'Override' not in l and 'grid=ceil' not in l]
out = '\n'.join(hdr) + f'\n; @launch grid=(256,1,1) block=(256,1,1) lds={LDS}\n'
out += f'''.amdgcn_target "amdgcn-amd-amdhsa--gfx950"
.text
.globl {K}
.p2align 8
.type {K},@function
{body}
.section .rodata,"a"
.p2align 6
.amdhsa_kernel {K}
  .amdhsa_next_free_vgpr 512
  .amdhsa_next_free_sgpr 102
  .amdhsa_accum_offset 256
  .amdhsa_group_segment_fixed_size 0
  .amdhsa_kernarg_size 88
  .amdhsa_user_sgpr_count 2
  .amdhsa_user_sgpr_kernarg_segment_ptr 1
  .amdhsa_system_sgpr_workgroup_id_x 1
.end_amdhsa_kernel
'''
dst = sys.argv[1] if len(sys.argv) > 1 else 'mega.s'
open(dst, 'w').write(out)
print('wrote', dst)
```
